```python
import torch

def _softmax(x, axis=-1):
    return torch.softmax(x, dim=axis)
def _gelu(x):
    return torch.nn.functional.gelu(x, approximate="tanh")
def _silu(x):
    return torch.nn.functional.silu(x)
def _sigmoid(x):
    return torch.sigmoid(x)
def _layernorm(x, axis=-1, eps=1e-5):
    m = x.mean(dim=axis, keepdim=True)
    v = x.var(dim=axis, keepdim=True, unbiased=False)
    return (x - m) / torch.sqrt(v + eps)
def _scatter_add(tgt, idx, src, axis=0):
    return tgt.clone().index_add_(axis, idx, src)
def _segment_sum(src, seg, n):
    out = torch.zeros((n,) + src.shape[1:], dtype=src.dtype)
    return out.index_add_(0, seg, src)
def _pad(x, pw):
    flat = tuple(v for pair in reversed(pw) for v in pair)
    return torch.nn.functional.pad(x, flat)

kernel_name = 'gated_mix__sliding_local_dilated__mha_block__prompt'

def setup_inputs():

    _w = (lambda a: (lambda t: t.to(torch.bfloat16) if t.is_floating_point() else t)(torch.as_tensor(a)))
    def _A_setup():
        B, S, D = 1, 2048, 640
        return {
            "x": _w((lambda *s: torch.randn(*s, dtype=torch.bfloat16) * 0.05)(B, S, D)),
            "wqkv": _w((lambda *s: torch.randn(*s, dtype=torch.bfloat16) * 1.6)(D, 3 * D)),
            "wo": _w((lambda *s: torch.randn(*s, dtype=torch.bfloat16) * 0.05)(D, D)),
        }
    _A_in = _A_setup()

    def _B_setup():
        B, S, D, H = 1, 2048, 640, 32
        return {
            "x": _w((lambda *s: torch.randn(*s, dtype=torch.bfloat16) * 0.05)(B, S, D)),
            "wqkv": _w((lambda *s: torch.randn(*s, dtype=torch.bfloat16) * 1.6)(D, 3 * D)),
            "wo": _w((lambda *s: torch.randn(*s, dtype=torch.bfloat16) * 0.1)(D, D)),
        }
    _B_in = _B_setup()

    return {
        "A_x": _A_in["x"],
        "A_wqkv": _A_in["wqkv"],
        "A_wo": _A_in["wo"],
        "B_x": _B_in["x"],
        "B_wqkv": _B_in["wqkv"],
        "B_wo": _B_in["wo"],
        "gate_w": _w((lambda *s: torch.randn(*s, dtype=torch.bfloat16) * 0.05)(640) * 16.0),
    }

def reference(A_x, A_wqkv, A_wo, B_x, B_wqkv, B_wo, gate_w):
    def _A_ref(x, wqkv, wo):
        B, S, D = x.shape
        H = 32; Dh = D // H
        W, dil = 8, 2
        qkv = (lambda x, *d: x.permute(*d))((x @ wqkv).reshape(B, S, 3, H, Dh), 2, 0, 3, 1, 4)
        q, k, v = qkv[0], qkv[1], qkv[2]
        scale = Dh ** -0.5
        pos = torch.arange(S)
        off = torch.arange(W) * dil
        idx = pos[:, None] - off[None, :]
        mask = idx >= 0
        idx_c = torch.where(mask, idx, 0).reshape(-1)
        kg = k[:, :, idx_c, :].reshape(B, H, S, W, Dh)
        vg = v[:, :, idx_c, :].reshape(B, H, S, W, Dh)
        logits = torch.einsum("bhsd,bhswd->bhsw", q, kg) * scale
        logits = torch.where(mask[None, None, :, :], logits, -1e9)
        attn = _softmax(logits, axis=-1)
        o = torch.einsum("bhsw,bhswd->bhsd", attn, vg)
        return (lambda x, *d: x.permute(*d))(o, 0, 2, 1, 3).reshape(B, S, D) @ wo

    def _B_ref(x, wqkv, wo):
        B, S, D = x.shape
        H = 32
        Dh = D // H
        qkv = (lambda x, *d: x.permute(*d))((x @ wqkv).reshape(B, S, 3, H, Dh), 2, 0, 3, 1, 4)
        q, k, v = qkv[0], qkv[1], qkv[2]
        scores = torch.einsum("bhqd,bhkd->bhqk", q, k) * (Dh ** -0.5)
        p = _softmax(scores, axis=-1)
        o = torch.einsum("bhqk,bhkd->bhqd", p, v)
        return (lambda x, *d: x.permute(*d))(o, 0, 2, 1, 3).reshape(B, S, D) @ wo

    x = A_x
    g = _sigmoid((x * gate_w).sum(-1, keepdims=True))
    a = _A_ref(x, A_wqkv, A_wo)
    b = _B_ref(x, B_wqkv, B_wo)
    return g * a + (1 - g) * b
```

```python
import math
import struct
import sys

NAME = "gated_mix__sliding_local_dilated__mha_block__prompt"

IMG = 2621440
TILE = 40960
OP_OFF = 6 * IMG
OP_TILE = 81920
WOT_OFF = OP_OFF + 64 * OP_TILE
WOT_SIZE = 1638400
GATE_OFF = WOT_OFF + WOT_SIZE
WS_USED = GATE_OFF + 8192

QSCALE = math.log2(math.e) / math.sqrt(20.0)


def f32(x):
    return "0x%08x" % struct.unpack("<I", struct.pack("<f", x))[0]


def magic(d, n):
    for s in range(1, 32):
        M = (1 << s) // d + 1
        if M >= (1 << 24) or (n - 1) * M >= (1 << 32):
            break
        if all(((x * M) >> s) == x // d for x in range(n)):
            return M, s
    raise ValueError("no magic")


class Asm:
    def __init__(self):
        self.lines = []

    def __call__(self, s):
        for ln in s.strip().split("\n"):
            self.lines.append("    " + ln.strip())

    def label(self, l):
        self.lines.append(l + ":")

    def c(self, s):
        self.lines.append("    ; " + s)

    def raw(self, s):
        self.lines.append(s)

    def text(self):
        return "\n".join(self.lines) + "\n"


def vr(a, n=1):
    return "v%d" % a if n == 1 else "v[%d:%d]" % (a, a + n - 1)


def ar(a, n=1):
    return "a%d" % a if n == 1 else "a[%d:%d]" % (a, a + n - 1)


def sr(a, n=1):
    return "s%d" % a if n == 1 else "s[%d:%d]" % (a, a + n - 1)


def srd(A, d, base, nbytes):
    A("s_mov_b32 s%d, s%d" % (d, base))
    A("s_and_b32 s%d, s%d, 0xffff" % (d + 1, base + 1))
    A("s_mov_b32 s%d, %d" % (d + 2, nbytes))
    A("s_mov_b32 s%d, 0x00020000" % (d + 3))


def vdiv(A, dst, src, d, n):
    M, s = magic(d, n)
    A("v_mul_u32_u24 v%d, %d, v%d" % (dst, M, src))
    A("v_lshrrev_b32 v%d, %d, v%d" % (dst, s, dst))


def kernel_header(A, name):
    A.raw(".globl %s" % name)
    A.raw(".p2align 8")
    A.raw(".type %s,@function" % name)
    A.label(name)


def descriptor(name, vgpr, sgpr, accum):
    return """.amdhsa_kernel %s
  .amdhsa_next_free_vgpr %d
  .amdhsa_next_free_sgpr %d
  .amdhsa_accum_offset %d
  .amdhsa_group_segment_fixed_size 0
  .amdhsa_kernarg_size 80
  .amdhsa_user_sgpr_count 2
  .amdhsa_user_sgpr_kernarg_segment_ptr 1
  .amdhsa_system_sgpr_workgroup_id_x 1
.end_amdhsa_kernel
""" % (name, vgpr, sgpr, accum)


def gen_k1(A):
    kernel_header(A, "k1_qkv_kernel")
    STG = 49152
    sX, sW, sWS = 12, 16, 20
    sWv, sMt, sNt, sXc, sI = 24, 25, 26, 27, 28
    sT0, sT1, sT2, sT3 = 29, 30, 31, 32
    sCur, sNext, sDel, sOffX, sOffW, sStep = 33, 34, 35, 36, 37, 38
    sM0X, sM0W = 39, 40
    sImg, sPc, sScale, sSt = 41, 42, 43, 44
    vL = 1
    vOX = [2, 3]
    vOW = [4, 5, 6, 7]
    vRX = [8, 9, 10, 11]
    vRW = [12, 13]
    vSt = 14
    vT = [15, 16, 17, 18, 19]
    bufs = [20, 36]
    ACC = 64

    A("s_cmp_ge_u32 s2, 256")
    A("s_cbranch_scc1 K1_END")
    A("s_load_dwordx4 s[4:7], s[0:1], 0")
    A("s_load_dwordx2 s[8:9], s[0:1], 32")
    A("s_load_dwordx2 s[10:11], s[0:1], 72")
    A("v_lshrrev_b32 v%d, 6, v0" % vT[0])
    A("v_and_b32 v%d, 63, v0" % vL)
    A("s_and_b32 s%d, s2, 7" % sXc)
    A("v_readfirstlane_b32 s%d, v%d" % (sWv, vT[0]))
    A("s_lshr_b32 s%d, s2, 3" % sI)
    A("s_cmp_ge_u32 s%d, 30" % sI)
    A("s_cbranch_scc1 K1_SIDE")
    A("s_lshr_b32 s%d, s%d, 1" % (sT0, sXc))
    A("s_mul_i32 s%d, s%d, 30" % (sT0, sT0))
    A("s_add_u32 s%d, s%d, s%d" % (sT0, sT0, sI))
    A("s_lshr_b32 s%d, s%d, 3" % (sNt, sT0))
    A("s_and_b32 s%d, s%d, 7" % (sMt, sT0))
    A("s_and_b32 s%d, s%d, 1" % (sT1, sXc))
    A("s_lshl_b32 s%d, s%d, 3" % (sT1, sT1))
    A("s_add_u32 s%d, s%d, s%d" % (sMt, sMt, sT1))
    A("v_lshrrev_b32 v%d, 3, v%d" % (vT[0], vL))
    A("v_and_b32 v%d, 7, v%d" % (vT[1], vL))
    A("v_lshrrev_b32 v%d, 4, v%d" % (vT[2], vL))
    A("v_xor_b32 v%d, v%d, v%d" % (vT[1], vT[1], vT[2]))
    A("s_lshl_b32 s%d, s%d, 7" % (sT0, sMt))
    A("s_lshl_b32 s%d, s%d, 4" % (sT1, sWv))
    A("s_add_u32 s%d, s%d, s%d" % (sT0, sT0, sT1))
    A("v_add_u32 v%d, s%d, v%d" % (vT[0], sT0, vT[0]))
    A("v_mul_u32_u24 v%d, 1280, v%d" % (vT[0], vT[0]))
    A("v_lshl_add_u32 v%d, v%d, 4, v%d" % (vOX[0], vT[1], vT[0]))
    A("v_xor_b32 v%d, 4, v%d" % (vT[1], vT[1]))
    A("v_add_u32 v%d, %d, v%d" % (vT[0], 8 * 1280, vT[0]))
    A("v_lshl_add_u32 v%d, v%d, 4, v%d" % (vOX[1], vT[1], vT[0]))
    A("s_lshr_b32 s%d, s%d, 2" % (sT0, sWv))
    A("s_lshl_b32 s%d, s%d, 1" % (sT1, sNt))
    A("s_add_u32 s%d, s%d, s%d" % (sT0, sT0, sT1))
    A("s_sub_u32 s%d, s%d, 15" % (sT1, sT0))
    A("s_cmp_ge_u32 s%d, 15" % sT0)
    A("s_cselect_b32 s%d, s%d, s%d" % (sT0, sT1, sT0))
    A("s_waitcnt lgkmcnt(0)")
    A("s_cselect_b32 s%d, s8, s6" % sW)
    A("s_cselect_b32 s%d, s9, s7" % (sW + 1))
    A("s_and_b32 s%d, s%d, 0xffff" % (sW + 1, sW + 1))
    A("s_mov_b32 s%d, %d" % (sW + 2, 640 * 3840))
    A("s_mov_b32 s%d, 0x00020000" % (sW + 3))
    srd(A, sX, 4, 2048 * 1280)
    srd(A, sWS, 10, WS_USED)
    A("s_and_b32 s%d, s%d, 3" % (sT1, sWv))
    A("s_mul_i32 s%d, s%d, %d" % (sT1, sT1, 16 * 3840))
    A("s_lshl_b32 s%d, s%d, 8" % (sT0, sT0))
    A("s_add_u32 s%d, s%d, s%d" % (sT0, sT0, sT1))
    A("v_mul_u32_u24 v%d, 3840, v%d" % (vT[0], vT[2]))
    A("v_add_u32 v%d, s%d, v%d" % (vT[0], sT0, vT[0]))
    A("v_bfe_u32 v%d, v%d, 2, 2" % (vT[1], vL))
    A("v_xor_b32 v%d, v%d, v%d" % (vT[1], vT[1], vT[2]))
    A("v_lshl_add_u32 v%d, v%d, 6, v%d" % (vT[0], vT[1], vT[0]))
    A("v_and_b32 v%d, 3, v%d" % (vT[1], vL))
    A("v_lshl_add_u32 v%d, v%d, 4, v%d" % (vOW[0], vT[1], vT[0]))
    for i in range(1, 4):
        A("v_add_u32 v%d, %d, v%d" % (vOW[i], 15360 * i, vOW[0]))
    A("s_lshl_b32 s%d, s%d, 11" % (sM0X, sWv))
    A("s_lshl_b32 s%d, s%d, 12" % (sM0W, sWv))
    A("s_add_u32 s%d, s%d, 16384" % (sM0W, sM0W))

    def dma(stage_sgpr_or_imm, soffX, soffW):
        for e in range(2):
            if isinstance(stage_sgpr_or_imm, int):
                A("s_add_u32 m0, s%d, %d" % (sM0X, stage_sgpr_or_imm + e * 1024))
                A("s_nop 0")
            else:
                A("s_add_u32 s%d, s%d, %s" % (sT0, sM0X, stage_sgpr_or_imm))
                A("s_add_u32 m0, s%d, %d" % (sT0, e * 1024))
                A("s_nop 0")
            A("buffer_load_dwordx4 v%d, s[%d:%d], %s offen lds" % (vOX[e], sX, sX + 3, soffX))
        for i in range(4):
            if isinstance(stage_sgpr_or_imm, int):
                A("s_add_u32 m0, s%d, %d" % (sM0W, stage_sgpr_or_imm + i * 1024))
                A("s_nop 0")
            else:
                A("s_add_u32 s%d, s%d, %s" % (sT0, sM0W, stage_sgpr_or_imm))
                A("s_add_u32 m0, s%d, %d" % (sT0, i * 1024))
                A("s_nop 0")
            A("buffer_load_dwordx4 v%d, s[%d:%d], %s offen lds" % (vOW[i], sW, sW + 3, soffW))

    for st in range(3):
        A("s_mov_b32 s%d, %d" % (sOffX, st * 128))
        A("s_mov_b32 s%d, %d" % (sOffW, st * 245760))
        dma(st * STG, "s%d" % sOffX, "s%d" % sOffW)
    A("s_mov_b32 s%d, %d" % (sOffX, 3 * 128))
    A("s_mov_b32 s%d, %d" % (sOffW, 3 * 245760))
    A("v_and_b32 v%d, 31, v%d" % (vT[0], vL))
    A("v_lshrrev_b32 v%d, 5, v%d" % (vT[1], vL))
    A("v_bfe_u32 v%d, v%d, 1, 3" % (vT[2], vL))
    A("v_xor_b32 v%d, v%d, v%d" % (vT[2], vT[2], vT[1]))
    A("s_lshr_b32 s%d, s%d, 2" % (sT0, sWv))
    A("s_lshl_b32 s%d, s%d, 13" % (sT0, sT0))
    A("v_lshlrev_b32 v%d, 7, v%d" % (vT[3], vT[0]))
    A("v_add_u32 v%d, s%d, v%d" % (vT[3], sT0, vT[3]))
    for j in range(4):
        A("v_xor_b32 v%d, %d, v%d" % (vT[4], 2 * j, vT[2]))
        A("v_lshl_add_u32 v%d, v%d, 4, v%d" % (vRX[j], vT[4], vT[3]))
    A("v_bfe_u32 v%d, v%d, 2, 2" % (vT[2], vL))
    A("v_lshl_add_u32 v%d, v%d, 3, v%d" % (vT[3], vT[1], vT[2]))
    A("v_lshlrev_b32 v%d, 8, v%d" % (vT[3], vT[3]))
    A("v_bfe_u32 v%d, v%d, 4, 1" % (vT[4], vL))
    A("v_lshl_add_u32 v%d, v%d, 5, v%d" % (vT[3], vT[4], vT[3]))
    A("v_and_b32 v%d, 3, v%d" % (vT[4], vL))
    A("v_lshl_add_u32 v%d, v%d, 3, v%d" % (vT[3], vT[4], vT[3]))
    A("s_bfe_u32 s%d, s%d, 0x10001" % (sT0, sWv))
    A("s_lshl_b32 s%d, s%d, 14" % (sT1, sT0))
    A("s_add_u32 s%d, s%d, 16384" % (sT1, sT1))
    A("v_add_u32 v%d, s%d, v%d" % (vT[3], sT1, vT[3]))
    A("s_and_b32 s%d, s%d, 1" % (sT2, sWv))
    A("s_lshl_b32 s%d, s%d, 1" % (sT3, sT2))
    A("v_xor_b32 v%d, s%d, v%d" % (vT[2], sT3, vT[2]))
    A("v_lshl_add_u32 v%d, v%d, 6, v%d" % (vRW[0], vT[2], vT[3]))
    A("v_xor_b32 v%d, 1, v%d" % (vT[2], vT[2]))
    A("v_lshl_add_u32 v%d, v%d, 6, v%d" % (vRW[1], vT[2], vT[3]))
    A("s_lshl_b32 s%d, s%d, 1" % (sT1, sNt))
    A("s_add_u32 s%d, s%d, s%d" % (sT1, sT1, sT0))
    A("s_mul_i32 s%d, s%d, 52" % (sImg, sT1))
    A("s_lshr_b32 s%d, s%d, 8" % (sImg, sImg))
    A("s_mul_i32 s%d, s%d, 5" % (sPc, sImg))
    A("s_sub_u32 s%d, s%d, s%d" % (sPc, sT1, sPc))
    A("s_lshl_b32 s%d, s%d, 7" % (sPc, sPc))
    A("s_lshl_b32 s%d, s%d, 6" % (sT2, sT2))
    A("s_add_u32 s%d, s%d, s%d" % (sPc, sPc, sT2))
    A("s_mul_i32 s%d, s%d, %d" % (sSt, sImg, IMG))
    A("s_lshr_b32 s%d, s%d, 2" % (sT0, sWv))
    A("s_lshl_b32 s%d, s%d, 1" % (sT0, sT0))
    A("s_lshl_b32 s%d, s%d, 2" % (sT1, sMt))
    A("s_add_u32 s%d, s%d, s%d" % (sT0, sT0, sT1))
    A("s_mul_i32 s%d, s%d, %d" % (sT0, sT0, TILE))
    A("s_add_u32 s%d, s%d, s%d" % (sSt, sSt, sT0))
    A("s_cmp_ge_u32 s%d, 3" % sImg)
    A("s_cselect_b32 s%d, 3, 0" % sT0)
    A("s_sub_u32 s%d, s%d, s%d" % (sImg, sImg, sT0))
    for i in range(64):
        A("v_mov_b32 v%d, 0" % (ACC + i))
    A("s_mov_b32 s%d, 0" % sCur)
    A("s_mov_b32 s%d, 0" % sStep)
    A("s_waitcnt vmcnt(12)")
    A("s_barrier")

    def reads(buf, j):
        b = bufs[buf]
        out = []
        out.append("ds_read_b128 %s, v%d" % (vr(b, 4), vRX[j]))
        out.append("ds_read_b64_tr_b16 %s, v%d offset:%d" % (vr(b + 8, 2), vRW[0], 4096 * j))
        out.append("ds_read_b64_tr_b16 %s, v%d offset:%d" % (vr(b + 10, 2), vRW[0], 4096 * j + 1024))
        out.append("ds_read_b128 %s, v%d offset:4096" % (vr(b + 4, 4), vRX[j]))
        out.append("ds_read_b64_tr_b16 %s, v%d offset:%d" % (vr(b + 12, 2), vRW[1], 4096 * j))
        out.append("ds_read_b64_tr_b16 %s, v%d offset:%d" % (vr(b + 14, 2), vRW[1], 4096 * j + 1024))
        return out

    def mfmas(buf, vtype):
        b = bufs[buf]
        out = []
        for (mi, ni) in ((0, 0), (1, 0), (0, 1), (1, 1)):
            d = vr(ACC + (mi * 2 + ni) * 16, 16)
            xf = vr(b + 4 * mi, 4)
            wf = vr(b + 8 + 4 * ni, 4)
            if vtype:
                out.append("v_mfma_f32_32x32x16_bf16 %s, %s, %s, %s" % (d, xf, wf, d))
            else:
                out.append("v_mfma_f32_32x32x16_bf16 %s, %s, %s, %s" % (d, wf, xf, d))
        return out

    for r in reads(0, 0):
        A(r)
    A("s_cmp_eq_u32 s%d, 2" % sImg)
    A("s_cbranch_scc1 K1_LOOP_V")

    for vtype in (0, 1):
        L = "K1_LOOP_V" if vtype else "K1_LOOP_Q"
        A.raw(".p2align 3")
        A.label(L)
        for j in range(3):
            for r in reads((j + 1) % 2, j + 1):
                A(r)
            A("s_waitcnt lgkmcnt(6)")
            for m in mfmas(j % 2, vtype):
                A(m)
        A("s_cmp_lt_u32 s%d, 8" % sStep)
        A("s_cbranch_scc1 %s_W6" % L)
        A("s_waitcnt vmcnt(0)")
        A.label(L + "_W6")
        A("s_waitcnt vmcnt(6) lgkmcnt(0)")
        A("s_barrier")
        A("s_add_u32 s%d, s%d, %d" % (sNext, sCur, STG))
        A("s_cmp_eq_u32 s%d, %d" % (sNext, 3 * STG))
        A("s_cselect_b32 s%d, 0, s%d" % (sNext, sNext))
        A("s_sub_u32 s%d, s%d, s%d" % (sDel, sNext, sCur))
        for r in vRX + vRW:
            A("v_add_u32 v%d, s%d, v%d" % (r, sDel, r))
        for r in reads(0, 0):
            A(r)
        ms = mfmas(1, vtype)
        A(ms[0])
        A(ms[1])
        A("s_cmp_ge_u32 s%d, 7" % sStep)
        A("s_cbranch_scc1 %s_NODMA" % L)
        dma("s%d" % sCur, "s%d" % sOffX, "s%d" % sOffW)
        A("s_add_u32 s%d, s%d, 128" % (sOffX, sOffX))
        A("s_add_u32 s%d, s%d, 245760" % (sOffW, sOffW))
        A.label(L + "_NODMA")
        A(ms[2])
        A(ms[3])
        A("s_mov_b32 s%d, s%d" % (sCur, sNext))
        A("s_add_u32 s%d, s%d, 1" % (sStep, sStep))
        A("s_cmp_lt_u32 s%d, 10" % sStep)
        A("s_cbranch_scc1 %s" % L)
        A("s_waitcnt lgkmcnt(0)")
        A("v_and_b32 v%d, 31, v%d" % (vT[0], vL))
        A("v_lshrrev_b32 v%d, 5, v%d" % (vT[1], vL))
        if not vtype:
            A("v_lshlrev_b32 v%d, 3, v%d" % (vT[0], vT[0]))
            A("v_lshl_add_u32 v%d, v%d, 8, v%d" % (vSt, vT[1], vT[0]))
            A("s_lshl_b32 s%d, s%d, 6" % (sT0, sPc))
            A("s_add_u32 s%d, s%d, s%d" % (sSt, sSt, sT0))
            A("s_add_u32 s%d, s%d, %d" % (sT1, sSt, TILE))
            A("s_cmp_eq_u32 s%d, 0" % sImg)
            A("s_cselect_b32 s%d, %s, 1.0" % (sScale, f32(QSCALE)))
            A("s_nop 7")
            k = 0
            for mi in range(2):
                for ni in range(2):
                    a = ACC + (mi * 2 + ni) * 16
                    for q in range(4):
                        t = 20 + 2 * (k % 8)
                        k += 1
                        for e in range(4):
                            A("v_mul_f32 v%d, s%d, v%d" % (a + 4 * q + e, sScale, a + 4 * q + e))
                        A("v_cvt_pk_bf16_f32 v%d, v%d, v%d" % (t, a + 4 * q, a + 4 * q + 1))
                        A("v_cvt_pk_bf16_f32 v%d, v%d, v%d" % (t + 1, a + 4 * q + 2, a + 4 * q + 3))
                        A("buffer_store_dwordx2 %s, v%d, s[%d:%d], s%d offen offset:%d" % (
                            vr(t, 2), vSt, sWS, sWS + 3, sSt if mi == 0 else sT1, (8 * ni + 2 * q) * 256))
        else:
            A("v_lshlrev_b32 v%d, 4, v%d" % (vT[0], vT[0]))
            A("v_mul_u32_u24 v%d, 10240, v%d" % (vT[1], vT[1]))
            A("v_add_u32 v%d, v%d, v%d" % (vSt, vT[0], vT[1]))
            A("s_lshl_b32 s%d, s%d, 4" % (sT0, sPc))
            A("s_add_u32 s%d, s%d, s%d" % (sSt, sSt, sT0))
            A("s_nop 7")
            k = 0
            for mi in range(2):
                for j in range(2):
                    A("s_add_u32 s%d, s%d, %d" % (sT1, sSt, mi * TILE + j * 20480))
                    for ni in range(2):
                        a = ACC + (mi * 2 + ni) * 16 + 8 * j
                        t = 20 + 4 * (k % 8)
                        k += 1
                        for e in range(4):
                            A("v_cvt_pk_bf16_f32 v%d, v%d, v%d" % (t + e, a + 2 * e, a + 2 * e + 1))
                        A("buffer_store_dwordx4 %s, v%d, s[%d:%d], s%d offen offset:%d" % (
                            vr(t, 4), vSt, sWS, sWS + 3, sT1, ni * 512))
        A("s_endpgm")

    A.label("K1_SIDE")
    sA, sG = 16, 44
    sGw = 30
    A("s_load_dwordx2 s[48:49], s[0:1], 16")
    A("s_load_dwordx4 s[52:55], s[0:1], 40")
    A("s_sub_u32 s%d, s%d, 30" % (sGw, sI))
    A("s_lshl_b32 s%d, s%d, 3" % (sGw, sGw))
    A("s_add_u32 s%d, s%d, s%d" % (sGw, sGw, sXc))
    A("s_lshl_b32 s%d, s%d, 3" % (sGw, sGw))
    A("s_add_u32 s%d, s%d, s%d" % (sGw, sGw, sWv))
    A("s_waitcnt lgkmcnt(0)")
    srd(A, sX, 4, 2048 * 1280)
    srd(A, sWS, 10, WS_USED)
    srd(A, sG, 54, 1280)
    vGW = 20
    vXX = 40
    A("v_and_b32 v2, 15, v%d" % vL)
    A("v_lshlrev_b32 v2, 4, v2")
    A("v_lshrrev_b32 v3, 4, v%d" % vL)
    for i in range(5):
        A("buffer_load_dwordx4 %s, v2, s[%d:%d], 0 offen offset:%d" % (vr(vGW + 4 * i, 4), sG, sG + 3, 256 * i))
    A("s_lshl_b32 s31, s%d, 4" % sGw)
    A("v_add_u32 v3, s31, v3")
    A("v_mul_u32_u24 v4, 1280, v3")
    A("v_add_u32 v4, v4, v2")
    for p in range(4):
        A("s_mov_b32 s32, %d" % (p * 4 * 1280))
        for i in range(5):
            A("buffer_load_dwordx4 %s, v4, s[%d:%d], s32 offen offset:%d" % (
                vr(vXX + 20 * p + 4 * i, 4), sX, sX + 3, 256 * i))
    for p in range(4):
        A("v_mov_b32 v%d, 0" % (8 + p))
    for p in range(4):
        A("s_waitcnt vmcnt(%d)" % (15 - 5 * p))
        for i in range(20):
            A("v_dot2_f32_bf16 v%d, v%d, v%d, v%d" % (8 + p, vXX + 20 * p + i, vGW + i, 8 + p))
    A("s_nop 3")
    for sh in (8, 4, 2, 1):
        for p in range(4):
            A("v_add_f32_dpp v%d, v%d, v%d row_ror:%d row_mask:0xf bank_mask:0xf" % (8 + p, 8 + p, 8 + p, sh))
        A("s_nop 1")
    for p in range(4):
        A("v_mul_f32 v%d, %s, v%d" % (8 + p, f32(-math.log2(math.e)), 8 + p))
    for p in range(4):
        A("v_exp_f32 v%d, v%d" % (8 + p, 8 + p))
    A("s_nop 0")
    for p in range(4):
        A("v_add_f32 v%d, 1.0, v%d" % (8 + p, 8 + p))
    for p in range(4):
        A("v_rcp_f32 v%d, v%d" % (8 + p, 8 + p))
    A("v_lshlrev_b32 v3, 2, v3")
    A("s_mov_b32 s32, %d" % GATE_OFF)
    A("s_mov_b32 exec_lo, 0x00010001")
    A("s_mov_b32 exec_hi, 0x00010001")
    for p in range(4):
        A("buffer_store_dword v%d, v3, s[%d:%d], s32 offen offset:%d" % (8 + p, sWS, sWS + 3, 16 * p))
    A("s_mov_b64 exec, -1")
    A("s_mov_b32 s33, 0x05040100")
    A("s_mov_b32 s34, 0x07060302")
    A("s_mov_b32 s35, %d" % WOT_OFF)
    A.label("K1_SIDE_T")
    A("s_cmp_ge_u32 s%d, 100" % sGw)
    A("s_cselect_b32 s%d, s52, s48" % sA)
    A("s_cselect_b32 s%d, s53, s49" % (sA + 1))
    A("s_and_b32 s%d, s%d, 0xffff" % (sA + 1, sA + 1))
    A("s_mov_b32 s%d, %d" % (sA + 2, 640 * 1280))
    A("s_mov_b32 s%d, 0x00020000" % (sA + 3))
    A("s_lshl_b32 s31, s%d, 6" % sGw)
    A("v_add_u32 v2, s31, v%d" % vL)
    vdiv(A, 3, 2, 80, 12800)
    A("v_mul_u32_u24 v4, 80, v3")
    A("v_sub_u32 v4, v2, v4")
    A("v_subrev_u32 v5, 80, v3")
    A("v_cmp_le_u32 vcc, 80, v3")
    A("s_nop 1")
    A("v_cndmask_b32 v5, v3, v5, vcc")
    vdiv(A, 6, 5, 5, 80)
    A("v_mul_u32_u24 v7, 5, v6")
    A("v_sub_u32 v7, v5, v7")
    A("v_lshrrev_b32 v8, 1, v7")
    A("v_mul_u32_u24 v8, 20, v8")
    A("v_and_b32 v9, 1, v7")
    A("v_lshl_add_u32 v8, v9, 2, v8")
    A("v_cmp_eq_u32 vcc, 4, v7")
    A("v_mov_b32 v9, 16")
    A("v_mov_b32 v10, 8")
    A("v_mov_b32 v11, 20")
    A("v_cndmask_b32 v8, v8, v9, vcc")
    A("v_cndmask_b32 v10, v10, v11, vcc")
    A("v_mad_u32_u24 v8, v6, 40, v8")
    A("v_add_u32 v10, v8, v10")
    A("v_mul_u32_u24 v8, 1280, v8")
    A("v_mul_u32_u24 v10, 1280, v10")
    A("v_lshl_add_u32 v8, v4, 4, v8")
    A("v_lshl_add_u32 v10, v4, 4, v10")
    R = 20
    for k in range(4):
        A("buffer_load_dwordx4 %s, v8, s[%d:%d], 0 offen offset:%d" % (vr(R + 4 * k, 4), sA, sA + 3, 1280 * k))
    for k in range(4):
        A("buffer_load_dwordx4 %s, v10, s[%d:%d], 0 offen offset:%d" % (vr(R + 16 + 4 * k, 4), sA, sA + 3, 1280 * k))
    vdiv(A, 5, 4, 10, 80)
    A("v_mul_u32_u24 v6, 10, v5")
    A("v_sub_u32 v6, v4, v6")
    A("v_lshlrev_b32 v6, 1, v6")
    A("v_lshrrev_b32 v7, 2, v3")
    A("v_mad_u32_u24 v5, v5, 40, v7")
    A("v_mul_u32_u24 v5, 5120, v5")
    A("v_and_b32 v7, 3, v3")
    A("v_lshl_add_u32 v5, v7, 8, v5")
    for g in range(2):
        if g:
            A("v_add_u32 v6, 1, v6")
        vdiv(A, 7, 6, 5, 20)
        A("v_mul_u32_u24 v9, 5, v7")
        A("v_sub_u32 v9, v6, v9")
        A("v_lshl_add_u32 v%d, v9, 10, v5" % (12 + g))
        A("v_lshl_add_u32 v%d, v7, 6, v%d" % (12 + g, 12 + g))
    A("s_waitcnt vmcnt(0)")
    O = 60
    for e in range(8):
        for t in range(4):
            A("v_perm_b32 v%d, v%d, v%d, s%d" % (O + 4 * e + t, R + 4 * (2 * t + 1) + e // 2, R + 4 * (2 * t) + e // 2, 33 + (e & 1)))
        A("buffer_store_dwordx4 %s, v%d, s[%d:%d], s35 offen offset:%d" % (
            vr(O + 4 * e, 4), 12 + e // 4, sWS, sWS + 3, 16 * (e % 4)))
    A("s_add_u32 s%d, s%d, 128" % (sGw, sGw))
    A("s_cmp_lt_u32 s%d, 200" % sGw)
    A("s_cbranch_scc0 K1_END")
    A("s_waitcnt vmcnt(0)")
    A("s_branch K1_SIDE_T")
    A.label("K1_END")
    A("s_endpgm")
    return descriptor("k1_qkv_kernel", 128, 64, 128)


def local_masks():
    cur, prev = [], []
    for rho in range(16):
        mc = mp = 0
        for l in range(64):
            q, hf = l % 32, l // 32
            kap = 8 * (rho // 4) + 4 * hf + rho % 4
            d = q - kap
            if 0 <= d <= 14 and d % 2 == 0:
                mc |= 1 << l
            d = q + 32 - kap
            if 0 <= d <= 14 and d % 2 == 0:
                mp |= 1 << l
        cur.append(mc)
        prev.append(mp)
    return cur, prev


def gen_k2(A):
    kernel_header(A, "k2_attn_kernel")
    sWS = 8
    sWv, sH, sT = 12, 13, 14
    sT0, sT1, sT2, sT3 = 15, 16, 17, 18
    sMV = 20
    sMk = 22
    sIter, sSync, sN, sFlag = 24, 25, 26, 27
    sPrevOk = 28
    sOst = 29
    sBad = 30
    vL, vR, vHf = 1, 2, 3
    vP, vVg = 4, 5
    vK, vV = 6, 7
    vK0, vV0 = 8, 9
    vG = 10
    vT = [11, 12, 13, 14, 15]
    Q0, Q1 = 16, 20
    K0, K1 = 24, 22
    V0, V1 = 28, 32
    P0, P1 = 36, 40
    RA = 44
    NEG = 52
    NEG = 64
    S = [80, 96]
    O = 112
    QA0, QA1 = 128, 132
    KC0, KC1 = 136, 134
    KP0, KP1 = 140, 144
    VC0, VC1, VP1 = 148, 152, 156
    PA = 160
    vD = 172

    A("s_cmp_ge_u32 s2, 256")
    A("s_cbranch_scc1 K2_END")
    A("s_load_dwordx2 s[4:5], s[0:1], 72")
    A("v_lshrrev_b32 v%d, 6, v0" % vT[0])
    A("v_and_b32 v%d, 63, v0" % vL)
    A("v_and_b32 v%d, 31, v0" % vR)
    A("v_readfirstlane_b32 s%d, v%d" % (sWv, vT[0]))
    A("v_lshrrev_b32 v%d, 5, v%d" % (vHf, vL))
    A("s_and_b32 s%d, s2, 7" % sH)
    A("s_lshl_b32 s%d, s%d, 2" % (sH, sH))
    A("s_bfe_u32 s%d, s2, 0x20003" % sT0)
    A("s_add_u32 s%d, s%d, s%d" % (sH, sH, sT0))
    A("s_lshr_b32 s%d, s2, 5" % sT)
    A("s_lshl_b32 s%d, s%d, 3" % (sT, sT))
    A("s_add_u32 s%d, s%d, s%d" % (sT, sT, sWv))
    A("v_lshlrev_b32 v%d, 3, v%d" % (vT[0], vR))
    A("v_lshl_add_u32 v%d, v%d, 9, v%d" % (vP, vHf, vT[0]))
    A("v_mov_b32 v%d, v%d" % (vK0, vP))
    A("v_mul_u32_u24 v%d, 10240, v%d" % (vT[0], vHf))
    A("v_lshl_add_u32 v%d, v%d, 4, v%d" % (vVg, vR, vT[0]))
    A("v_mul_u32_u24 v%d, 320, v%d" % (vT[0], vHf))
    A("v_lshl_add_u32 v%d, v%d, 4, v%d" % (vV0, vR, vT[0]))
    A("v_add_u32 v%d, 81920, v%d" % (vV0, vV0))
    A("s_mov_b32 s%d, 0x000fffff" % sMV)
    A("s_mov_b32 s%d, 0x000fffff" % (sMV + 1))
    for b in (V0, V1, VC0, VC1, VP1):
        for i in range(4):
            A("v_mov_b32 v%d, 0x3f803f80" % (b + i))
    for r in (Q1, Q1 + 1, QA1, QA1 + 1):
        A("v_mov_b32 v%d, 0" % r)
    A("s_mul_i32 s%d, s%d, %d" % (sT0, sT, TILE))
    A("s_mul_i32 s%d, s%d, 1280" % (sT1, sH))
    A("s_add_u32 s%d, s%d, s%d" % (sT1, sT1, sT0))
    A("s_mul_i32 s%d, s%d, 320" % (sT2, sH))
    A("s_add_u32 s%d, s%d, s%d" % (sT2, sT2, sT0))
    A("s_waitcnt lgkmcnt(0)")
    srd(A, sWS, 4, WS_USED)
    W = "s[%d:%d]" % (sWS, sWS + 3)

    def ld_planes(d0, d1, soff, q=False):
        A("buffer_load_dwordx2 %s, v%d, %s, s%d offen" % (vr(d0, 2), vP, W, soff))
        A("buffer_load_dwordx2 %s, v%d, %s, s%d offen offset:256" % (vr(d0 + 2, 2), vP, W, soff))
        if q:
            A("s_mov_b32 exec_hi, 0")
        A("buffer_load_dwordx2 %s, v%d, %s, s%d offen offset:1024" % (vr(d1, 2), vP, W, soff))
        if q:
            A("s_mov_b32 exec_hi, -1")

    ld_planes(QA0, QA1, sT1, q=True)
    A("s_add_u32 s%d, s%d, %d" % (sT3, sT1, IMG))
    ld_planes(KC0, KC1, sT3)
    A("s_sub_u32 s%d, s%d, %d" % (sT3, sT3, TILE))
    ld_planes(KP0, KP1, sT3)
    A("s_mov_b64 exec, s[%d:%d]" % (sMV, sMV + 1))
    A("s_add_u32 s%d, s%d, %d" % (sT3, sT2, 2 * IMG))
    A("buffer_load_dwordx4 %s, v%d, %s, s%d offen" % (vr(VC0, 4), vVg, W, sT3))
    A("s_add_u32 s%d, s%d, %d" % (sT3, sT2, 2 * IMG + 20480))
    A("buffer_load_dwordx4 %s, v%d, %s, s%d offen" % (vr(VC1, 4), vVg, W, sT3))
    A("s_add_u32 s%d, s%d, %d" % (sT3, sT2, 2 * IMG + 20480 - TILE))
    A("buffer_load_dwordx4 %s, v%d, %s, s%d offen" % (vr(VP1, 4), vVg, W, sT3))
    A("s_mov_b64 exec, -1")
    A("s_lshl_b32 s%d, s%d, 7" % (sT3, sT))
    A("s_add_u32 s%d, s%d, %d" % (sT3, sT3, GATE_OFF))
    A("v_lshlrev_b32 v%d, 2, v%d" % (vT[0], vR))
    A("buffer_load_dword v%d, v%d, %s, s%d offen" % (vG, vT[0], W, sT3))
    A("s_add_u32 s%d, s%d, %d" % (sT3, sT1, 3 * IMG))
    ld_planes(Q0, Q1, sT3, q=True)
    A("s_cmp_ge_u32 s%d, 4" % sWv)
    A("s_cbranch_scc1 K2_DMA_V")
    for i in range(5):
        A("v_add_u32 v%d, %d, v%d" % (vT[0], 64 * i, vL))
        vdiv(A, vT[1], vT[0], 80, 320)
        A("v_mul_u32_u24 v%d, 80, v%d" % (vT[2], vT[1]))
        A("v_sub_u32 v%d, v%d, v%d" % (vT[0], vT[0], vT[2]))
        A("v_mul_u32_u24 v%d, %d, v%d" % (vT[1], TILE, vT[1]))
        A("v_lshl_add_u32 v%d, v%d, 4, v%d" % (vD + i, vT[0], vT[1]))
    A("s_mul_i32 s%d, s%d, 1280" % (sT3, sH))
    A("s_add_u32 s%d, s%d, %d" % (sT3, sT3, 4 * IMG))
    A("s_mov_b32 s%d, 0" % sT0)
    A("s_branch K2_DMA_GO")
    A.label("K2_DMA_V")
    for i in range(5):
        A("v_add_u32 v%d, %d, v%d" % (vT[0], 64 * i, vL))
        vdiv(A, vT[1], vT[0], 80, 320)
        A("v_mul_u32_u24 v%d, 80, v%d" % (vT[2], vT[1]))
        A("v_sub_u32 v%d, v%d, v%d" % (vT[0], vT[0], vT[2]))
        vdiv(A, vT[2], vT[0], 20, 80)
        A("v_mul_u32_u24 v%d, 20, v%d" % (vT[3], vT[2]))
        A("v_sub_u32 v%d, v%d, v%d" % (vT[0], vT[0], vT[3]))
        A("v_mul_u32_u24 v%d, %d, v%d" % (vT[1], TILE, vT[1]))
        A("v_mul_u32_u24 v%d, 10240, v%d" % (vT[2], vT[2]))
        A("v_add_u32 v%d, v%d, v%d" % (vT[1], vT[1], vT[2]))
        A("v_lshl_add_u32 v%d, v%d, 4, v%d" % (vD + i, vT[0], vT[1]))
    A("s_mul_i32 s%d, s%d, 320" % (sT3, sH))
    A("s_add_u32 s%d, s%d, %d" % (sT3, sT3, 5 * IMG))
    A("s_mov_b32 s%d, 81920" % sT0)
    A.label("K2_DMA_GO")
    A("s_and_b32 s%d, s%d, 3" % (sT2, sWv))
    A("s_mul_i32 s%d, s%d, %d" % (sT1, sT2, 4 * TILE))
    A("s_add_u32 s%d, s%d, s%d" % (sT3, sT3, sT1))
    A("s_mul_i32 s%d, s%d, 5120" % (sT1, sT2))
    A("s_add_u32 s%d, s%d, s%d" % (sT0, sT0, sT1))
    for rnd in range(4):
        for i in range(5):
            A("s_add_u32 m0, s%d, %d" % (sT0, rnd * 20480 + i * 1024))
            A("s_nop 0")
            A("buffer_load_dwordx4 v%d, %s, s%d offen lds" % (vD + i, W, sT3))
        if rnd < 3:
            A("s_add_u32 s%d, s%d, %d" % (sT3, sT3, 16 * TILE))
    cur, prev = local_masks()
    SC, SP = S[0], S[1]
    A("s_cmp_eq_u32 s%d, 0" % sT)
    A("s_cselect_b32 s%d, 0, -1" % sPrevOk)
    A("v_mov_b32 v%d, 0xff800000" % vT[4])
    A("s_waitcnt vmcnt(27)")
    A("v_mfma_f32_32x32x16_bf16 %s, %s, %s, 0" % (vr(SC, 16), vr(KC0, 4), vr(QA0, 4)))
    A("v_mfma_f32_32x32x16_bf16 %s, %s, %s, 0" % (vr(SP, 16), vr(KP0, 4), vr(QA0, 4)))
    A("v_mfma_f32_32x32x8_bf16 %s, %s, %s, %s" % (vr(SC, 16), vr(KC1, 2), vr(QA1, 2), vr(SC, 16)))
    A("v_mfma_f32_32x32x8_bf16 %s, %s, %s, %s" % (vr(SP, 16), vr(KP1, 2), vr(QA1, 2), vr(SP, 16)))
    A("s_nop 11")
    regs = []
    for rho in range(16):
        A("s_mov_b32 s%d, 0x%08x" % (sMk, cur[rho] & 0xffffffff))
        A("s_mov_b32 s%d, 0x%08x" % (sMk + 1, cur[rho] >> 32))
        A("v_cndmask_b32_e64 v%d, v%d, v%d, s[%d:%d]" % (SC + rho, vT[4], SC + rho, sMk, sMk + 1))
        regs.append(SC + rho)
    for rho in range(8, 16):
        A("s_and_b32 s%d, s%d, 0x%08x" % (sMk, sPrevOk, prev[rho] & 0xffffffff))
        A("s_and_b32 s%d, s%d, 0x%08x" % (sMk + 1, sPrevOk, prev[rho] >> 32))
        A("v_cndmask_b32_e64 v%d, v%d, v%d, s[%d:%d]" % (SP + rho, vT[4], SP + rho, sMk, sMk + 1))
        regs.append(SP + rho)
    assert all(p == 0 for p in prev[:8])
    A("v_max3_f32 v%d, v%d, v%d, v%d" % (vT[0], regs[0], regs[1], regs[2]))
    A("v_max3_f32 v%d, v%d, v%d, v%d" % (vT[1], regs[3], regs[4], regs[5]))
    k = 6
    t = 0
    while k < 24:
        A("v_max3_f32 v%d, v%d, v%d, v%d" % (vT[t], vT[t], regs[k], regs[k + 1]))
        k += 2
        t ^= 1
    A("v_max_f32 v%d, v%d, v%d" % (vT[0], vT[0], vT[1]))
    A("v_mov_b32 v%d, v%d" % (vT[1], vT[0]))
    A("s_nop 1")
    A("v_permlane32_swap_b32 v%d, v%d" % (vT[0], vT[1]))
    A("s_nop 1")
    A("v_max_f32 v%d, v%d, v%d" % (vT[0], vT[0], vT[1]))
    for r in regs:
        A("v_sub_f32 v%d, v%d, v%d" % (r, r, vT[0]))
    for r in regs:
        A("v_exp_f32 v%d, v%d" % (r, r))
    A("s_nop 0")
    for i in range(12):
        A("v_cvt_pk_bf16_f32 v%d, v%d, v%d" % (PA + i, regs[2 * i], regs[2 * i + 1]))
    A("s_waitcnt vmcnt(23)")
    A("v_mfma_f32_32x32x16_bf16 %s, %s, %s, 0" % (vr(O, 16), vr(VC0, 4), vr(PA, 4)))
    A("v_mfma_f32_32x32x16_bf16 %s, %s, %s, %s" % (vr(O, 16), vr(VC1, 4), vr(PA + 4, 4), vr(O, 16)))
    A("v_mfma_f32_32x32x16_bf16 %s, %s, %s, %s" % (vr(O, 16), vr(VP1, 4), vr(PA + 8, 4), vr(O, 16)))
    A("s_nop 11")
    A("v_rcp_f32 v%d, v%d" % (vT[0], O + 12))
    A("s_nop 0")
    A("v_mul_f32 v%d, v%d, v%d" % (vT[0], vT[0], vG))
    for i in range(12):
        A("v_mul_f32 v%d, v%d, v%d" % (O + i, O + i, vT[0]))
    for i in range(6):
        A("v_cvt_pk_bf16_f32 v%d, v%d, v%d" % (RA + i, O + 2 * i, O + 2 * i + 1))
    A("s_mov_b32 s%d, 1" % sN)
    A("s_mov_b32 s%d, 0" % sFlag)
    A("s_mov_b32 s%d, 3" % sSync)
    A("s_waitcnt vmcnt(15)")
    A("s_barrier")
    A.label("K2_RESTART")
    A("v_mov_b32 v%d, 0xff800000" % vT[0])
    A("v_mov_b32 v%d, v%d" % (vK, vK0))
    A.label("K2_MAXP")
    A("ds_read_b64 %s, v%d" % (vr(K0, 2), vK))
    A("ds_read_b64 %s, v%d offset:256" % (vr(K0 + 2, 2), vK))
    A("ds_read_b64 %s, v%d offset:1024" % (vr(K1, 2), vK))
    A("s_waitcnt lgkmcnt(0)")
    A("v_mfma_f32_32x32x16_bf16 %s, %s, %s, 0" % (vr(S[0], 16), vr(K0, 4), vr(Q0, 4)))
    A("v_mfma_f32_32x32x8_bf16 %s, %s, %s, %s" % (vr(S[0], 16), vr(K1, 2), vr(Q1, 2), vr(S[0], 16)))
    A("v_add_u32 v%d, 1280, v%d" % (vK, vK))
    A("s_nop 10")
    for i in range(8):
        A("v_max3_f32 v%d, v%d, v%d, v%d" % (vT[0], vT[0], S[0] + 2 * i, S[0] + 2 * i + 1))
    A("s_sub_u32 s%d, s%d, 1" % (sN, sN))
    A("s_cmp_lg_u32 s%d, 0" % sN)
    A("s_cbranch_scc1 K2_MAXP")
    A("ds_read_b64 %s, v%d" % (vr(K0, 2), vK0))
    A("ds_read_b64 %s, v%d offset:256" % (vr(K0 + 2, 2), vK0))
    A("ds_read_b64 %s, v%d offset:1024" % (vr(K1, 2), vK0))
    A("s_mov_b64 exec, s[%d:%d]" % (sMV, sMV + 1))
    A("ds_read_b128 %s, v%d" % (vr(V0, 4), vV0))
    A("s_mov_b64 exec, -1")
    A("v_mov_b32 v%d, v%d" % (vT[1], vT[0]))
    A("s_nop 1")
    A("v_permlane32_swap_b32 v%d, v%d" % (vT[0], vT[1]))
    A("s_nop 1")
    A("v_max_f32 v%d, v%d, v%d" % (vT[0], vT[0], vT[1]))
    for i in range(16):
        A("v_sub_f32 v%d, 0, v%d" % (NEG + i, vT[0]))
    for i in range(16):
        A("v_mov_b32 v%d, 0" % (O + i))
    for i in range(4):
        A("v_mov_b32 v%d, 0" % (P1 + i))
    A("v_mov_b32 v%d, v%d" % (vK, vK0))
    A("v_mov_b32 v%d, v%d" % (vV, vV0))
    A("s_waitcnt lgkmcnt(0)")
    A("v_mfma_f32_32x32x16_bf16 %s, %s, %s, %s" % (vr(S[0], 16), vr(K0, 4), vr(Q0, 4), vr(NEG, 16)))
    A("v_mfma_f32_32x32x8_bf16 %s, %s, %s, %s" % (vr(S[0], 16), vr(K1, 2), vr(Q1, 2), vr(S[0], 16)))
    A("ds_read_b64 %s, v%d offset:1280" % (vr(K0, 2), vK))
    A("ds_read_b64 %s, v%d offset:1536" % (vr(K0 + 2, 2), vK))
    A("ds_read_b64 %s, v%d offset:2304" % (vr(K1, 2), vK))
    A("s_mov_b32 s%d, 0" % sIter)
    A("s_nop 7")
    A("s_waitcnt lgkmcnt(0)")
    A.raw(".p2align 3")
    A.label("K2_LOOP")
    A("s_cmp_eq_u32 s%d, s%d" % (sIter, sSync))
    A("s_cbranch_scc0 K2_NOSYNC")
    A("s_waitcnt vmcnt(0)")
    A("s_barrier")
    A.label("K2_NOSYNC")
    for u in range(4):
        sc, sn = S[u % 2], S[(u + 1) % 2]

        def grp(g, P):
            for e in range(4):
                A("v_exp_f32 v%d, v%d" % (sc + 4 * g + e, sc + 4 * g + e))
            A("v_cvt_pk_bf16_f32 v%d, v%d, v%d" % (P + 2 * (g % 2), sc + 4 * g, sc + 4 * g + 1))
            A("v_cvt_pk_bf16_f32 v%d, v%d, v%d" % (P + 2 * (g % 2) + 1, sc + 4 * g + 2, sc + 4 * g + 3))
        A("s_waitcnt lgkmcnt(3)")
        A("v_mfma_f32_32x32x16_bf16 %s, %s, %s, %s" % (vr(sn, 16), vr(K0, 4), vr(Q0, 4), vr(NEG, 16)))
        A("ds_read_b64 %s, v%d offset:%d" % (vr(K0, 2), vK, (u + 2) * 1280))
        A("ds_read_b64 %s, v%d offset:%d" % (vr(K0 + 2, 2), vK, (u + 2) * 1280 + 256))
        grp(0, P0)
        A("s_waitcnt lgkmcnt(4)")
        A("v_mfma_f32_32x32x16_bf16 %s, %s, %s, %s" % (vr(O, 16), vr(V1, 4), vr(P1, 4), vr(O, 16)))
        A("s_mov_b64 exec, s[%d:%d]" % (sMV, sMV + 1))
        A("ds_read_b128 %s, v%d offset:%d" % (vr(V1, 4), vV, u * 1280 + 640))
        A("s_mov_b64 exec, -1")
        grp(1, P0)
        A("s_waitcnt lgkmcnt(4)")
        A("v_mfma_f32_32x32x8_bf16 %s, %s, %s, %s" % (vr(sn, 16), vr(K1, 2), vr(Q1, 2), vr(sn, 16)))
        A("ds_read_b64 %s, v%d offset:%d" % (vr(K1, 2), vK, (u + 2) * 1280 + 1024))
        grp(2, P1)
        A("s_waitcnt lgkmcnt(4)")
        A("v_mfma_f32_32x32x16_bf16 %s, %s, %s, %s" % (vr(O, 16), vr(V0, 4), vr(P0, 4), vr(O, 16)))
        A("s_mov_b64 exec, s[%d:%d]" % (sMV, sMV + 1))
        A("ds_read_b128 %s, v%d offset:%d" % (vr(V0, 4), vV, (u + 1) * 1280))
        A("s_mov_b64 exec, -1")
        grp(3, P1)
    A("v_add_u32 v%d, 5120, v%d" % (vK, vK))
    A("v_add_u32 v%d, 5120, v%d" % (vV, vV))
    A("s_add_u32 s%d, s%d, 1" % (sIter, sIter))
    A("s_cmp_lt_u32 s%d, 16" % sIter)
    A("s_cbranch_scc1 K2_LOOP")
    A("s_waitcnt lgkmcnt(0)")
    A("v_mfma_f32_32x32x16_bf16 %s, %s, %s, %s" % (vr(O, 16), vr(V1, 4), vr(P1, 4), vr(O, 16)))
    A("v_mov_b32 v%d, 0x207" % vT[1])
    A("v_mov_b32 v%d, 0x5f800000" % vT[2])
    A("s_nop 11")
    A("v_cmp_nle_f32 s[%d:%d], v%d, v%d" % (sBad, sBad + 1, O + 12, vT[2]))
    for i in range(12):
        A("v_cmp_class_f32 vcc, v%d, v%d" % (O + i, vT[1]))
        A("s_or_b64 s[%d:%d], s[%d:%d], vcc" % (sBad, sBad + 1, sBad, sBad + 1))
    A("s_cmp_eq_u64 s[%d:%d], 0" % (sBad, sBad + 1))
    A("s_cbranch_scc1 K2_OUT")
    A("s_cmp_lg_u32 s%d, 0" % sFlag)
    A("s_cbranch_scc1 K2_OUT")
    A("s_mov_b32 s%d, 1" % sFlag)
    A("s_mov_b32 s%d, 64" % sN)
    A("s_mov_b32 s%d, -1" % sSync)
    A("s_branch K2_RESTART")
    A.label("K2_OUT")
    A("v_rcp_f32 v%d, v%d" % (vT[0], O + 12))
    A("v_sub_f32 v%d, 1.0, v%d" % (vG, vG))
    A("v_mul_f32 v%d, v%d, v%d" % (vT[0], vT[0], vG))
    for i in range(12):
        A("v_mul_f32 v%d, v%d, v%d" % (O + i, O + i, vT[0]))
    for i in range(6):
        A("v_cvt_pk_bf16_f32 v%d, v%d, v%d" % (P0 + i, O + 2 * i, O + 2 * i + 1))
    A("s_lshr_b32 s%d, s%d, 1" % (sT0, sH))
    A("s_mul_i32 s%d, s%d, %d" % (sT0, sT0, 5 * 512))
    A("s_mul_i32 s%d, s%d, %d" % (sT1, sT, OP_TILE))
    A("s_add_u32 s%d, s%d, s%d" % (sT0, sT0, sT1))
    A("s_add_u32 s%d, s%d, %d" % (sT0, sT0, OP_OFF))
    A("s_and_b32 s%d, s%d, 1" % (sT1, sH))
    A("s_lshl_b32 s%d, s%d, 10" % (sT2, sT1))
    A("s_add_u32 s%d, s%d, s%d" % (sT2, sT2, sT0))
    A("s_lshl_b32 s%d, s%d, 3" % (sT1, sT1))
    A("s_add_u32 s%d, s%d, s%d" % (sT1, sT1, sT0))
    A("s_add_u32 s%d, s%d, %d" % (sT3, sT2, 80 * 512))
    A("s_add_u32 s%d, s%d, %d" % (sT0, sT1, 80 * 512))
    A("v_lshlrev_b32 v%d, 4, v%d" % (vT[1], vL))
    A("buffer_store_dwordx4 %s, v%d, %s, s%d offen" % (vr(RA, 4), vT[1], W, sT2))
    A("buffer_store_dwordx4 %s, v%d, %s, s%d offen" % (vr(P0, 4), vT[1], W, sT3))
    A("s_mov_b32 exec_hi, 0")
    A("buffer_store_dwordx2 %s, v%d, %s, s%d offen offset:2048" % (vr(RA + 4, 2), vT[1], W, sT1))
    A("buffer_store_dwordx2 %s, v%d, %s, s%d offen offset:2048" % (vr(P0 + 4, 2), vT[1], W, sT0))
    A.label("K2_END")
    A("s_endpgm")
    return descriptor("k2_attn_kernel", 184, 40, 184)


def gen_k3(A):
    kernel_header(A, "k3_out_kernel")
    sWS, sOut = 8, 12
    sWv, sMt, sNb = 16, 17, 18
    sT0, sT1 = 19, 20
    sO = [21, 22, 23, 24]
    sWo = 25
    vL = 1
    vO = [2, 3, 4, 5, 6]
    vW = 7
    vT = [8, 9, 10, 11]
    ACC = 12

    def buf(kap, idx):
        if kap < 4:
            return vr(92 + kap * 36 + idx * 4, 4)
        return ar((kap - 4) * 36 + idx * 4, 4)

    A("s_cmp_ge_u32 s2, 256")
    A("s_cbranch_scc1 K3_END")
    A("s_load_dwordx2 s[4:5], s[0:1], 72")
    A("s_load_dwordx2 s[6:7], s[0:1], 56")
    A("v_lshrrev_b32 v%d, 6, v0" % vT[0])
    A("v_and_b32 v%d, 63, v0" % vL)
    A("s_and_b32 s%d, s2, 7" % sMt)
    A("v_readfirstlane_b32 s%d, v%d" % (sWv, vT[0]))
    A("s_lshl_b32 s%d, s%d, 2" % (sMt, sMt))
    A("s_bfe_u32 s%d, s2, 0x20003" % sT0)
    A("s_add_u32 s%d, s%d, s%d" % (sMt, sMt, sT0))
    A("s_lshr_b32 s%d, s2, 5" % sNb)
    A("v_and_b32 v%d, 15, v%d" % (vT[0], vL))
    A("v_lshrrev_b32 v%d, 4, v%d" % (vT[1], vL))
    A("v_lshlrev_b32 v%d, 4, v%d" % (vT[0], vT[0]))
    A("v_lshl_add_u32 v%d, v%d, 9, v%d" % (vO[0], vT[1], vT[0]))
    for j in range(1, 5):
        A("v_add_u32 v%d, %d, v%d" % (vO[j], 4096 * j, vO[0]))
    A("v_lshlrev_b32 v%d, 4, v%d" % (vW, vL))
    A("s_mul_i32 s%d, s%d, %d" % (sT0, sMt, 2 * OP_TILE))
    A("s_mul_i32 s%d, s%d, %d" % (sT1, sWv, 10 * 2048))
    A("s_add_u32 s%d, s%d, s%d" % (sT0, sT0, sT1))
    A("s_add_u32 s%d, s%d, %d" % (sT0, sT0, OP_OFF))
    for rho in range(4):
        A("s_add_u32 s%d, s%d, %d" % (sT1, sWv, rho))
        A("s_and_b32 s%d, s%d, 3" % (sT1, sT1))
        A("s_and_b32 s%d, s%d, 1" % (sO[rho], sT1))
        A("s_lshl_b32 s%d, s%d, 8" % (sO[rho], sO[rho]))
        A("s_lshr_b32 s%d, s%d, 1" % (sT1, sT1))
        A("s_mul_i32 s%d, s%d, %d" % (sT1, sT1, OP_TILE))
        A("s_add_u32 s%d, s%d, s%d" % (sO[rho], sO[rho], sT1))
        A("s_add_u32 s%d, s%d, s%d" % (sO[rho], sO[rho], sT0))
    A("s_mul_i32 s%d, s%d, 40" % (sWo, sNb))
    A("s_mul_i32 s%d, s%d, 10" % (sT1, sWv))
    A("s_add_u32 s%d, s%d, s%d" % (sWo, sWo, sT1))
    A("s_mul_i32 s%d, s%d, 5120" % (sWo, sWo))
    A("s_add_u32 s%d, s%d, %d" % (sWo, sWo, WOT_OFF))
    A("s_waitcnt lgkmcnt(0)")
    srd(A, sWS, 4, WS_USED)
    srd(A, sOut, 6, 2048 * 1280)
    W = "s[%d:%d]" % (sWS, sWS + 3)

    def loads(kap):
        for rho in range(4):
            A("buffer_load_dwordx4 %s, v%d, %s, s%d offen offset:%d" % (
                buf(kap, rho), vO[kap // 2], W, sO[rho], (kap % 2) * 2048))
        for nu in range(4):
            A("buffer_load_dwordx4 %s, v%d, %s, s%d offen offset:%d" % (buf(kap, 4 + nu), vW, W, sWo, nu * 1024))
        A("s_add_u32 s%d, s%d, 4096" % (sWo, sWo))
        A("buffer_load_dwordx4 %s, v%d, %s, s%d offen" % (buf(kap, 8), vW, W, sWo))
        A("s_add_u32 s%d, s%d, 1024" % (sWo, sWo))

    for kap in range(7):
        loads(kap)
    issued = 7
    for kap in range(10):
        A("s_waitcnt vmcnt(%d)" % ((issued - kap - 1) * 9))
        if issued < 10:
            loads(issued)
            issued += 1
        for rho in range(4):
            for nu in range(5):
                d = vr(ACC + (rho * 5 + nu) * 4, 4)
                A("v_mfma_f32_16x16x32_bf16 %s, %s, %s, %s" % (d, buf(kap, 4 + nu), buf(kap, rho), "0" if kap == 0 else d))
    A("s_nop 7")
    for rho in range(1, 4):
        A("s_add_u32 s%d, s%d, %d" % (sT0, sWv, rho))
        A("s_and_b32 s%d, s%d, 3" % (sT0, sT0))
        A("s_mul_i32 s%d, s%d, 15360" % (sT0, sT0))
        A("v_add_u32 v%d, s%d, v%d" % (vT[0], sT0, vW))
        for nu in range(5):
            A("ds_write_b128 v%d, %s offset:%d" % (vT[0], vr(ACC + (rho * 5 + nu) * 4, 4), ((rho - 1) * 5 + nu) * 1024))
    A("s_mul_i32 s%d, s%d, 15360" % (sT0, sWv))
    A("v_add_u32 v%d, s%d, v%d" % (vT[0], sT0, vW))
    A("s_waitcnt lgkmcnt(0)")
    A("s_barrier")
    for i in range(15):
        A("ds_read_b128 %s, v%d offset:%d" % (vr(92 + 4 * i, 4), vT[0], i * 1024))
    A("v_and_b32 v%d, 15, v%d" % (vT[1], vL))
    A("v_lshrrev_b32 v%d, 4, v%d" % (vT[2], vL))
    A("v_mul_u32_u24 v%d, 1280, v%d" % (vT[1], vT[1]))
    A("v_mul_u32_u24 v%d, 40, v%d" % (vT[2], vT[2]))
    A("v_add_u32 v%d, v%d, v%d" % (vT[1], vT[1], vT[2]))
    A("s_lshl_b32 s%d, s%d, 2" % (sT0, sMt))
    A("s_add_u32 s%d, s%d, s%d" % (sT0, sT0, sWv))
    A("s_mul_i32 s%d, s%d, %d" % (sT0, sT0, 16 * 1280))
    A("s_mul_i32 s%d, s%d, 160" % (sT1, sNb))
    A("s_add_u32 s%d, s%d, s%d" % (sT0, sT0, sT1))
    for s in range(3):
        A("s_waitcnt lgkmcnt(%d)" % (10 - 5 * s))
        for i in range(20):
            A("v_add_f32 v%d, v%d, v%d" % (ACC + i, ACC + i, 92 + 20 * s + i))
    for i in range(10):
        A("v_cvt_pk_bf16_f32 v%d, v%d, v%d" % (40 + i, ACC + 2 * i, ACC + 2 * i + 1))
    OUT = "s[%d:%d]" % (sOut, sOut + 3)
    A("buffer_store_dwordx4 %s, v%d, %s, s%d offen" % (vr(40, 4), vT[1], OUT, sT0))
    A("buffer_store_dwordx4 %s, v%d, %s, s%d offen offset:16" % (vr(44, 4), vT[1], OUT, sT0))
    A("buffer_store_dwordx2 %s, v%d, %s, s%d offen offset:32" % (vr(48, 2), vT[1], OUT, sT0))
    A.label("K3_END")
    A("s_endpgm")
    return descriptor("k3_out_kernel", 236 + 216, 32, 236)


def main():
    ref = open("cdna_kernels/%s.s.ref" % NAME).read().split("\n")
    hdr = [l for l in ref if l.startswith(";") and "@launch" not in l and "Override launch" not in l and "grid=ceil" not in l]
    A = Asm()
    for l in hdr:
        if l.startswith(";   offset") or l.startswith("; Kernarg"):
            A.raw(l)
    A.raw("; @launch kernel=k1_qkv_kernel grid=(256,1,1) block=(512,1,1) lds=147456")
    A.raw("; @launch kernel=k2_attn_kernel grid=(256,1,1) block=(512,1,1) lds=163840")
    A.raw("; @launch kernel=k3_out_kernel grid=(256,1,1) block=(256,1,1) lds=61440")
    A.raw('.amdgcn_target "amdgcn-amd-amdhsa--gfx950"')
    A.raw(".text")
    d = [gen_k1(A), gen_k2(A), gen_k3(A)]
    A.raw('.section .rodata,"a"')
    for x in d:
        A.raw(".p2align 6")
        A.raw(x)
    out = sys.argv[1] if len(sys.argv) > 1 else "cdna_kernels/%s.s" % NAME
    open(out, "w").write(A.text())


if __name__ == "__main__":
    main()
```
